```python
import torch

def _softmax(x, axis=-1):
    return torch.softmax(x, dim=axis)
def _gelu(x):
    return torch.nn.functional.gelu(x, approximate="tanh")
def _silu(x):
    return torch.nn.functional.silu(x)
def _sigmoid(x):
    return torch.sigmoid(x)
def _layernorm(x, axis=-1, eps=1e-5):
    m = x.mean(dim=axis, keepdim=True)
    v = x.var(dim=axis, keepdim=True, unbiased=False)
    return (x - m) / torch.sqrt(v + eps)
def _scatter_add(tgt, idx, src, axis=0):
    return tgt.clone().index_add_(axis, idx, src)
def _segment_sum(src, seg, n):
    out = torch.zeros((n,) + src.shape[1:], dtype=src.dtype)
    return out.index_add_(0, seg, src)
def _pad(x, pw):
    flat = tuple(v for pair in reversed(pw) for v in pair)
    return torch.nn.functional.pad(x, flat)

kernel_name = 'sequential_preLN__sliding_block__dense_activation_gelu__prompt'

def setup_inputs():

    _w = (lambda a: (lambda t: t.to(torch.bfloat16) if t.is_floating_point() else t)(torch.as_tensor(a)))
    def _A_setup():
        B, S, D = 1, 2048, 512
        return {
            "x": _w((lambda *s: torch.randn(*s, dtype=torch.bfloat16) * 0.05)(B, S, D)),
            "wqkv": _w((lambda *s: torch.randn(*s, dtype=torch.bfloat16) * 0.05)(D, 3 * D)),
            "wo": _w((lambda *s: torch.randn(*s, dtype=torch.bfloat16) * 0.05)(D, D)),
        }
    _A_in = _A_setup()

    def _B_setup():
        B, S, D, F = 1, 2048, 512, 1376
        return {
            "x": _w((lambda *s: torch.randn(*s, dtype=torch.bfloat16) * 0.05)(B, S, D)),
            "w1": _w((lambda *s: torch.randn(*s, dtype=torch.bfloat16) * 0.8)(D, F) * (D ** -0.5)),
            "b1": _w((lambda *s: torch.randn(*s, dtype=torch.bfloat16) * 0.8)(F) * 0.01),
            "w2": _w((lambda *s: torch.randn(*s, dtype=torch.bfloat16) * 0.8)(F, D) * (F ** -0.5)),
            "b2": _w((lambda *s: torch.randn(*s, dtype=torch.bfloat16) * 0.8)(D) * 0.01),
        }
    _B_in = _B_setup()

    return {
        "A_x": _A_in["x"],
        "A_wqkv": _A_in["wqkv"],
        "A_wo": _A_in["wo"],
        "B_x": _B_in["x"],
        "B_w1": _B_in["w1"],
        "B_b1": _B_in["b1"],
        "B_w2": _B_in["w2"],
        "B_b2": _B_in["b2"],
    }

def reference(A_x, A_wqkv, A_wo, B_x, B_w1, B_b1, B_w2, B_b2):
    def _A_ref(x, wqkv, wo):
        B, S, D = x.shape
        H = 32; Dh = D // H; W = 256
        qkv = (lambda x, *d: x.permute(*d))((x @ wqkv).reshape(B, S, 3, H, Dh), 2, 0, 3, 1, 4)
        q, k, v = qkv[0], qkv[1], qkv[2]
        scores = torch.einsum("bhqd,bhkd->bhqk", q, k) * (Dh ** -0.5)
        idx = torch.arange(S)
        mask = (idx[:, None] - idx[None, :] >= 0) & (idx[:, None] - idx[None, :] < W)
        scores = torch.where(mask[None, None], scores, -1e9)
        p = _softmax(scores, axis=-1)
        o = torch.einsum("bhqk,bhkd->bhqd", p, v)
        return (lambda x, *d: x.permute(*d))(o, 0, 2, 1, 3).reshape(B, S, D) @ wo

    def _B_ref(x, w1, b1, w2, b2):
        h = torch.einsum("bsd,df->bsf", x, w1) + b1
        h = _gelu(h)
        return torch.einsum("bsf,fd->bsd", h, w2) + b2

    x = A_x
    h = x + _A_ref(_layernorm(x, axis=-1), A_wqkv, A_wo)
    h2 = h + _B_ref(_layernorm(h, axis=-1), B_w1, B_b1, B_w2, B_b2)
    return h2
```

```python
import re
class Asm:
    def __init__(self):
        self.lines=[]
        self.lab=0
    def __call__(self, s, *more):
        for l in (s,)+more:
            for x in l.split('\n'):
                x=x.strip()
                if x: self.lines.append(x)
    def label(self, name):
        self.lines.append(name+':')
    def newlabel(self, p='L'):
        self.lab+=1
        return f"{p}_{self.lab}"
    def nop(self, n):
        while n>0:
            k=min(n,16); self.lines.append(f"s_nop {k-1}"); n-=k
    def text(self):
        out=[]
        for l in self.lines:
            if l.endswith(':') or l.startswith('.') or l.startswith(';'): out.append(l)
            else: out.append('    '+l)
        return '\n'.join(out)+'\n'

def vr(base, n=1):
    return f"v{base}" if n==1 else f"v[{base}:{base+n-1}]"
def sr(base, n=1):
    return f"s{base}" if n==1 else f"s[{base}:{base+n-1}]"

REG=re.compile(r'\b([vsa])(\d+)\b|\b([vsa])\[(\d+):(\d+)\]|\b(vcc|exec|m0|scc)\b')
def regs_of(op):
    out=[]
    for m in REG.finditer(op):
        if m.group(1): out.append((m.group(1),int(m.group(2))))
        elif m.group(3):
            for i in range(int(m.group(4)),int(m.group(5))+1): out.append((m.group(3),i))
        else: out.append((m.group(6),0))
    return out
TRANS=('v_exp_f32','v_log_f32','v_rcp_f32','v_rsq_f32','v_sqrt_f32','v_sin_f32','v_cos_f32')
def classify(line):
    line=line.split(';')[0].strip()
    if not line or line.endswith(':') or line.startswith('.'): return None
    parts=line.split(None,1)
    mn=parts[0]; ops=[o.strip() for o in parts[1].split(',')] if len(parts)>1 else []
    return mn,ops
def analyze(mn,ops):
    w=[];r=[]
    kind='other'
    if mn.startswith('v_mfma'):
        kind='mfma'; w=regs_of(ops[0]); r=regs_of(ops[1])+regs_of(ops[2]); c=regs_of(ops[3])
        return dict(kind=kind,w=w,r=r,c=c,passes=8 if '32x32' in mn else 4)
    if mn.startswith('v_cmp'):
        kind='valu'; w=regs_of(ops[0]); r=sum([regs_of(o) for o in ops[1:]],[])
    elif mn.startswith('v_readfirstlane') or mn.startswith('v_readlane'):
        kind='readlane'; w=regs_of(ops[0]); r=sum([regs_of(o) for o in ops[1:]],[])
    elif mn.startswith('v_permlane'):
        kind='permlane'; w=regs_of(ops[0])+regs_of(ops[1]); r=list(w)
    elif mn.startswith('v_'):
        kind='trans' if mn.replace('_e32','').replace('_e64','') in TRANS else 'valu'
        w=regs_of(ops[0]); r=sum([regs_of(o) for o in ops[1:]],[])
        if mn.startswith(('v_fmac','v_dot2c','v_pk_fmac')): r+=w
        if mn.startswith('v_cndmask') and len(ops)==3: r+=[('vcc',0)]
        if '_co_' in mn and len(ops)>1: w+=regs_of(ops[1])
        if 'dpp' in ' '.join(ops) or 'row_' in ' '.join(ops) or 'quad_perm' in ' '.join(ops): kind='dpp'
    elif mn.startswith(('buffer_load','global_load')):
        kind='vmem'
        if 'lds' in mn or any(re.search(r'\blds\b',o) for o in ops):
            kind='dma'; r=sum([regs_of(o) for o in ops],[])+[('m0',0)]
        else:
            w=regs_of(ops[0]); r=sum([regs_of(o) for o in ops[1:]],[])
    elif mn.startswith(('buffer_store','global_store')):
        kind='store'; r=sum([regs_of(o) for o in ops],[])
        if mn.startswith('buffer_store'): data=regs_of(ops[0])
        else: data=regs_of(ops[1])
        return dict(kind=kind,w=[],r=r,data=data,wide=('x3' in mn or 'x4' in mn))
    elif mn.startswith(('buffer_atomic','global_atomic')):
        kind='vmem'; r=sum([regs_of(o) for o in ops],[])
    elif mn.startswith('ds_read') or mn.startswith('ds_bpermute') or mn.startswith('ds_swizzle'):
        kind='ds'; w=regs_of(ops[0]); r=sum([regs_of(o) for o in ops[1:]],[])
    elif mn.startswith('ds_'):
        kind='ds'; r=sum([regs_of(o) for o in ops],[])
    elif mn.startswith('s_'):
        kind='salu'
        if mn.startswith(('s_cmp','s_cbranch','s_branch','s_waitcnt','s_barrier','s_nop','s_endpgm','s_setprio','s_sleep','s_bitcmp')):
            r=sum([regs_of(o) for o in ops],[])
        else:
            w=regs_of(ops[0]) if ops else []; r=sum([regs_of(o) for o in ops[1:]],[])
            if 'saveexec' in mn: w+=[('exec',0)]
    return dict(kind=kind,w=w,r=r)

def check_hazards(lines):
    probs=[]
    hist=[]
    pos=0
    for ln,line in enumerate(lines):
        c=classify(line)
        if c is None: continue
        mn,ops=c
        info=analyze(mn,ops); info['mn']=mn; info['line']=line
        for (p,h) in reversed(hist):
            d=pos-p-1
            if d>20: break
            hw=set(h['w']); R=set(info['r']); W=set(info['w'])
            def need(n,why):
                if d<n: probs.append((ln,f"{why}: need {n} have {d}: [{h['line']}] -> [{line}]"))
            hv=h['kind'] in('valu','trans','dpp','permlane','readlane')
            vw={x for x in hw if x[0] in 'va'}
            sw={x for x in hw if x[0] in ('s','vcc')}
            if hv and h['kind']!='readlane':
                if info['kind']=='mfma' and vw&(R|set(info['c'])): need(2,'VALU->MFMA')
                if info['kind']=='permlane' and vw&R: need(2,'VALU->permlane')
                if info['kind']=='dpp' and vw&R: need(2,'VALU->DPP')
                if info['kind']=='readlane' and vw&R: need(1,'VALU->readlane')
            if h['kind']=='trans' and info['kind'] in('valu','dpp','permlane','mfma','readlane') and vw&R: need(1 if info['kind'] in('valu','dpp') else 2,'trans->use')
            if hv and sw:
                if info['kind'] in('valu','trans','dpp') and sw&R: need(2,'VALU sgpr->VALU read')
                if info['kind'] in('vmem','dma','store') and sw&R: need(5,'VALU sgpr->VMEM')
                if info['kind']=='readlane' and sw&R: need(4,'VALU sgpr->lane select')
                if info['kind']=='salu' and sw&R: need(1,'VALU sgpr->SALU (pad)')
            if hv and ('exec',0) in hw and info['kind']=='mfma': need(4,'VALU exec->MFMA')
            if h['kind']=='salu' and ('m0',0) in hw and info['kind']=='dma': need(1,'m0->dma')
            if h['kind']=='mfma':
                P=h['passes']
                n_valu={4:8,8:12}[P]; n_ab={4:8,8:12}[P]; n_cov={4:6,8:10}[P]; n_war={4:3,8:7}[P]
                if info['kind']=='mfma':
                    if hw&R: need(n_ab,'MFMA D->MFMA A/B')
                    C=set(info['c'])
                    if hw&C and not (hw==C and info['passes']==P): need(n_cov,'MFMA D->MFMA C overlap')
                    if hw&C and hw==C and info['passes']!=P: need(n_cov,'MFMA D->MFMA C diff passes')
                    if hw&W and not (hw==W): need(n_valu,'MFMA D WAW partial')
                elif info['kind'] in('valu','trans','dpp','permlane','readlane'):
                    if hw&(R|W): need(n_valu,'MFMA D->VALU')
                    if set(h['c'])&W: need(n_war,'MFMA C WAR VALU')
                elif info['kind'] in('vmem','dma','store','ds'):
                    if hw&(R|W): need(n_valu,'MFMA D->MEM')
            if h['kind']=='store' and h.get('wide') and info['kind'] in('valu','trans','dpp','permlane') and set(h['data'])&W: need(2,'store data WAR')
        step=1
        if mn=='s_nop': step=int(ops[0],0)+1
        hist.append((pos,info));
        pos+=step
        if len(hist)>64: hist=hist[-64:]
    return probs
```

```python
import sys
from asmlib import *

KN='sequential_preLN__sliding_block__dense_activation_gelu__prompt_kernel'
MB=1<<20
WS_Q=0; WS_K=2*MB; WS_V=4*MB; WS_O=6*MB; WS_H=8*MB; WS_G=10*MB; WS_ST=16*MB; WS_FLAG=17*MB; WS_STAMP=24*MB
WS_SIZE=32*MB
P_X=16;P_WQKV=18;P_WO=20;P_W1=24;P_B1=26;P_W2=28;P_B2=30;P_OUT=32;P_DBG=34;P_WS=36
S_WAVE=38;S_TG=39;S_LOCAL=40;S_HW=41
SRD0=44;SRD1=48;SRD2=52;SRD3=56
V_LANE=1
QSCALE=0.25*1.4426950408889634
import struct
def f2u(f): return struct.unpack('<I',struct.pack('<f',f))[0]
def hx(f): return hex(f2u(f))

class Cfg:
    stamps=False
    sc1=False
    persist=False
    p2_koff=0
    p3_woff=0; p3_red=65536
    p4_woff=0; p4_scr=98304

def srd(A,dst,ptr,size,off=0):
    if off:
        A(f"s_add_u32 s{dst}, s{ptr}, {hex(off)}", f"s_addc_u32 s{dst+1}, s{ptr+1}, 0")
    else:
        A(f"s_mov_b32 s{dst}, s{ptr}", f"s_mov_b32 s{dst+1}, s{ptr+1}")
    A(f"s_mov_b32 s{dst+2}, {hex(size)}", f"s_mov_b32 s{dst+3}, 0x20000")

def prologue(A,endlabel):
    A("s_load_dwordx16 s[16:31], s[0:1], 0",
      "s_load_dwordx4 s[32:35], s[0:1], 64",
      "s_load_dwordx2 s[36:37], s[0:1], 80",
      "s_cmp_ge_u32 s2, 256",
      f"s_cbranch_scc1 {endlabel}",
      f"v_and_b32 v{V_LANE}, 63, v0",
      "v_lshrrev_b32 v2, 6, v0",
      f"s_and_b32 s{S_TG}, s2, 7",
      f"v_readfirstlane_b32 s{S_WAVE}, v2",
      f"s_lshr_b32 s{S_LOCAL}, s2, 3",
      "s_waitcnt lgkmcnt(0)",
      f"s_sub_u32 s{S_HW}, s{S_WAVE}, 4")

stamp_ctr=[0]
def stamp(A,cfg,idx):
    if not cfg.stamps: return
    A("s_memtime s[96:97]","s_waitcnt lgkmcnt(0)",
      f"s_lshl_b32 s98, s2, 10", f"s_lshl_b32 s99, s{S_WAVE}, 7", "s_add_u32 s98, s98, s99",
      f"s_add_u32 s98, s98, {WS_STAMP+idx*4}",
      "v_mov_b32 v254, s96", "v_mov_b32 v255, s98",
      f"global_store_dword v255, v254, s[{P_WS}:{P_WS+1}]")

def phase1(A,cfg):
    sc=" sc1" if cfg.sc1 else ""
    L_help=A.newlabel('P1H'); L_done=A.newlabel('P1D')
    S_RB=60;S_HG=61
    A(f"s_and_b32 s{S_RB}, s{S_LOCAL}, 3", f"s_lshl_b32 s62, s{S_TG}, 2", f"s_add_u32 s{S_RB}, s{S_RB}, s62",
      f"s_lshr_b32 s{S_HG}, s{S_LOCAL}, 2")
    A(f"s_cmp_ge_u32 s{S_WAVE}, 4", f"s_cbranch_scc1 {L_help}")
    ACC=2
    XF=52
    WF=60
    XA=84
    XB=88
    WA=92; WB=93; ONES=94
    SUM=96; SQ=97; CS=98
    T=104
    S_RH=62;S_CH=63;S_SLOT=64;S_CNT=65
    A(f"s_and_b32 s{S_RH}, s{S_WAVE}, 1", f"s_lshr_b32 s{S_CH}, s{S_WAVE}, 1")
    A(f"v_and_b32 v{T}, 31, v{V_LANE}", f"v_lshrrev_b32 v{T+1}, 5, v{V_LANE}",
      f"s_lshl_b32 s66, s{S_RH}, 5", f"v_add_u32 v{T+2}, s66, v{T}",
      f"v_lshrrev_b32 v{T+3}, 1, v{T+2}", f"v_and_b32 v{T+3}, 7, v{T+3}", f"v_xor_b32 v{T+3}, v{T+3}, v{T+1}",
      f"v_lshlrev_b32 v{T+3}, 4, v{T+3}", f"v_lshlrev_b32 v{T+2}, 7, v{T+2}", f"v_add_u32 v{XB}, v{T+2}, v{T+3}")
    for ks in range(1,4): A(f"v_xor_b32 v{XB+ks}, {ks*32}, v{XB}")
    A(f"v_and_b32 v{T+2}, 15, v{V_LANE}",
      f"v_lshrrev_b32 v{T+3}, 2, v{T+2}",
      f"v_lshl_add_u32 v{T+3}, v{T+1}, 3, v{T+3}",
      f"v_lshlrev_b32 v{T+3}, 7, v{T+3}",
      f"v_lshrrev_b32 v{T+4}, 3, v{T+2}",
      f"v_xor_b32 v{T+4}, s{S_CH}, v{T+4}",
      f"v_lshl_add_u32 v{T+3}, v{T+4}, 6, v{T+3}",
      f"v_bfe_u32 v{T+4}, v{V_LANE}, 4, 1",
      f"v_lshl_add_u32 v{T+3}, v{T+4}, 5, v{T+3}",
      f"v_and_b32 v{T+4}, 3, v{T+2}",
      f"v_lshl_add_u32 v{T+3}, v{T+4}, 3, v{T+3}",
      f"v_add_u32 v{WB}, 8192, v{T+3}",
      f"v_mov_b32 v{ONES}, 0x3f803f80")
    for r in range(48): A(f"v_mov_b32 v{ACC+r}, 0")
    for r in (SUM,SQ,CS,CS+1,CS+2): A(f"v_mov_b32 v{r}, 0")
    A(f"s_mov_b32 s{S_SLOT}, 0", f"s_mov_b32 s{S_CNT}, 0")
    L=A.newlabel('P1L')
    A.label(L)
    for ks in range(4): A(f"v_add_u32 v{XA+ks}, s{S_SLOT}, v{XB+ks}")
    A(f"v_add_u32 v{WA}, s{S_SLOT}, v{WB}")
    A("s_barrier")
    def reads(ks):
        b=ks&1
        A(f"ds_read_b128 {vr(XF+4*b,4)}, v{XA+ks}")
        for st in range(3):
            o=st*8192+ks*2048
            A(f"ds_read_b64_tr_b16 {vr(WF+12*b+4*st,2)}, v{WA} offset:{o}",
              f"ds_read_b64_tr_b16 {vr(WF+12*b+4*st+2,2)}, v{WA} offset:{o+512}")
    reads(0)
    for ks in range(4):
        b=ks&1
        if ks<3: reads(ks+1)
        A(f"s_waitcnt lgkmcnt({7 if ks<3 else 0})")
        x=vr(XF+4*b,4)
        for st in range(3):
            w=vr(WF+12*b+4*st,4); acc=vr(ACC+16*st,16)
            if st<2: A(f"v_mfma_f32_32x32x16_bf16 {acc}, {w}, {x}, {acc}")
            else:    A(f"v_mfma_f32_32x32x16_bf16 {acc}, {x}, {w}, {acc}")
            for j in range(4):
                A(f"v_dot2c_f32_bf16 v{CS+st}, v{ONES}, v{WF+12*b+4*st+j}")
            if st==0:
                for j in range(4): A(f"v_dot2c_f32_bf16 v{SUM}, v{ONES}, v{XF+4*b+j}")
            if st==1:
                for j in range(4): A(f"v_dot2c_f32_bf16 v{SQ}, v{XF+4*b+j}, v{XF+4*b+j}")
    A(f"s_add_u32 s{S_SLOT}, s{S_SLOT}, 32768", f"s_and_b32 s{S_SLOT}, s{S_SLOT}, 0x1ffff",
      f"s_add_u32 s{S_CNT}, s{S_CNT}, 1", f"s_cmp_lt_u32 s{S_CNT}, 8", f"s_cbranch_scc1 {L}")
    stamp(A,cfg,2)
    A.nop(4)
    for r in (SUM,SQ,CS,CS+1,CS+2):
        A(f"v_mov_b32 v{T+8}, v{r}"); A.nop(2)
        A(f"v_permlane32_swap_b32 v{r}, v{T+8}"); A.nop(1)
        A(f"v_add_f32 v{r}, v{r}, v{T+8}")
    MEAN=T+8;RSTD=T+9;MR=T+10;RQ=T+11;MRQ=T+12;SA=T+13
    A(f"v_mul_f32 v{MEAN}, {hx(1/512)}, v{SUM}",
      f"v_mul_f32 v{RSTD}, {hx(1/512)}, v{SQ}",
      f"v_fma_f32 v{RSTD}, -v{MEAN}, v{MEAN}, v{RSTD}",
      f"v_add_f32 v{RSTD}, {hx(1e-5)}, v{RSTD}",
      f"v_rsq_f32 v{RSTD}, v{RSTD}", "s_nop 0",
      f"v_mul_f32 v{MR}, v{MEAN}, v{RSTD}",
      f"v_mul_f32 v{RQ}, {hx(QSCALE)}, v{RSTD}",
      f"v_mul_f32 v{MRQ}, {hx(QSCALE)}, v{MR}")
    A(f"s_lshl_b32 s66, s{S_WAVE}, 10", "s_add_u32 s66, s66, 131072",
      f"v_lshl_add_u32 v{SA}, v{T}, 2, s66",
      f"ds_write_b32 v{SA}, v{CS}", f"ds_write_b32 v{SA}, v{CS+1} offset:128",
      f"ds_write_b32 v{SA}, v{RSTD} offset:256", f"ds_write_b32 v{SA}, v{MR} offset:384")
    RA=T+14
    A(f"v_lshl_add_u32 v{RA}, v{T+1}, 4, s66", "s_waitcnt lgkmcnt(0)")
    TB=128
    for a in range(4):
        for g in range(4):
            A(f"ds_read_b128 {vr(TB+16*a+4*g,4)}, v{RA} offset:{a*128+g*32}")
        if a==1: pass
    S_TILE=66;S_HEAD=67
    A(f"s_lshl_b32 s{S_TILE}, s{S_RB}, 1", f"s_add_u32 s{S_TILE}, s{S_TILE}, s{S_RH}",
      f"s_lshl_b32 s{S_HEAD}, s{S_HG}, 2", f"s_lshl_b32 s68, s{S_CH}, 1", f"s_add_u32 s{S_HEAD}, s{S_HEAD}, s68",
      f"s_lshl_b32 s68, s{S_HEAD}, 16", f"s_lshl_b32 s69, s{S_TILE}, 10", "s_add_u32 s68, s68, s69")
    QA=T+15; VA=T+16
    A(f"v_lshl_add_u32 v{QA}, v{V_LANE}, 4, s68")
    A(f"v_lshrrev_b32 v{VA}, 4, v{T}", f"v_lshlrev_b32 v{VA}, 16, v{VA}",
      f"v_lshl_add_u32 v{VA}, v{T+1}, 8, v{VA}", f"v_and_b32 v{T+17}, 15, v{T}",
      f"v_lshl_add_u32 v{VA}, v{T+17}, 4, v{VA}", f"v_add_u32 v{VA}, s68, v{VA}")
    srd(A,SRD2,P_WS,WS_SIZE)
    A("s_waitcnt lgkmcnt(0)")
    PK=192
    for st in range(3):
        for r in range(16):
            a=ACC+16*st+r
            if st==0:
                A(f"v_mul_f32 v{TB+r}, v{MRQ}, v{TB+r}", f"v_fma_f32 v{a}, v{a}, v{RQ}, -v{TB+r}")
            elif st==1:
                A(f"v_mul_f32 v{TB+16+r}, v{MR}, v{TB+16+r}", f"v_fma_f32 v{a}, v{a}, v{RSTD}, -v{TB+16+r}")
            else:
                A(f"v_mul_f32 v{TB+48+r}, v{CS+2}, v{TB+48+r}", f"v_fma_f32 v{a}, v{a}, v{TB+32+r}, -v{TB+48+r}")
        p=PK+8*st
        for j in range(8): A(f"v_cvt_pk_bf16_f32 v{p+j}, v{ACC+16*st+2*j}, v{ACC+16*st+2*j+1}")
        if st<2:
            base=WS_Q if st==0 else WS_K
            A(f"s_mov_b32 s70, {hex(base)}", f"s_mov_b32 s71, {hex(base+65536)}",
              f"buffer_store_dwordx4 {vr(p,4)}, v{QA}, s[{SRD2}:{SRD2+3}], s70 offen{sc}",
              f"buffer_store_dwordx4 {vr(p+4,4)}, v{QA}, s[{SRD2}:{SRD2+3}], s71 offen{sc}")
        else:
            A(f"s_mov_b32 s70, {hex(WS_V)}",
              f"buffer_store_dwordx4 {vr(p,4)}, v{VA}, s[{SRD2}:{SRD2+3}], s70 offen{sc}",
              f"buffer_store_dwordx4 {vr(p+4,4)}, v{VA}, s[{SRD2}:{SRD2+3}], s70 offen offset:512{sc}")
    A(f"s_branch {L_done}")
    A.label(L_help)
    srd(A,SRD0,P_X,2048*1024); srd(A,SRD1,P_WQKV,512*3072)
    VXE=2;VXO=3;VW=4;T=8
    A(f"v_lshrrev_b32 v{T}, 3, v{V_LANE}",
      f"v_and_b32 v{T+1}, 7, v{V_LANE}",
      f"v_lshrrev_b32 v{T+2}, 4, v{V_LANE}",
      f"v_xor_b32 v{T+3}, v{T+1}, v{T+2}",
      f"v_lshlrev_b32 v{T+3}, 4, v{T+3}",
      f"v_lshl_add_u32 v{VXE}, v{T}, 10, v{T+3}",
      f"v_xor_b32 v{VXO}, 64, v{VXE}",
      f"v_and_b32 v{T+2}, 1, v{T+2}", f"v_lshlrev_b32 v{T+2}, 2, v{T+2}",
      f"v_xor_b32 v{T+3}, v{T+1}, v{T+2}", f"v_lshlrev_b32 v{T+3}, 4, v{T+3}",
      f"v_mul_u32_u24 v{VW}, 3072, v{T}", f"v_add_u32 v{VW}, v{VW}, v{T+3}")
    S_XE=62;S_XO=63;S_WO=64
    S_LX=70;S_LW=71;S_SLOT=72;S_CNT=73
    A(f"s_lshl_b32 s{S_XE}, s{S_RB}, 6", f"s_lshl_b32 s74, s{S_HW}, 4", f"s_add_u32 s{S_XE}, s{S_XE}, s74",
      f"s_lshl_b32 s{S_XE}, s{S_XE}, 10", f"s_add_u32 s{S_XO}, s{S_XE}, 8192")
    for i in range(6):
        A(f"s_mul_i32 s74, s{S_HW}, 6", f"s_add_u32 s74, s74, {i}",
          f"s_and_b32 s75, s74, 7", f"s_mul_i32 s75, s75, {8*3072}",
          f"s_lshr_b32 s74, s74, 3", f"s_lshl_b32 s74, s74, 10", f"s_add_u32 s75, s75, s74",
          f"s_lshl_b32 s74, s{S_HG}, 7", f"s_add_u32 s{S_WO+i}, s75, s74")
    A(f"s_lshl_b32 s{S_LX}, s{S_HW}, 11", f"s_mul_i32 s{S_LW}, s{S_HW}, 6144", f"s_add_u32 s{S_LW}, s{S_LW}, 8192",
      f"s_mov_b32 s{S_SLOT}, 0")
    def issue():
        A(f"s_add_u32 m0, s{S_SLOT}, s{S_LX}", "s_nop 0",
          f"buffer_load_dwordx4 v{VXE}, s[{SRD0}:{SRD0+3}], s{S_XE} offen lds",
          "s_add_u32 m0, m0, 1024", "s_nop 0",
          f"buffer_load_dwordx4 v{VXO}, s[{SRD0}:{SRD0+3}], s{S_XO} offen lds",
          f"s_add_u32 m0, s{S_SLOT}, s{S_LW}", "s_nop 0")
        for i in range(6):
            A(f"buffer_load_dwordx4 v{VW}, s[{SRD1}:{SRD1+3}], s{S_WO+i} offen lds")
            if i<5: A("s_add_u32 m0, m0, 1024", "s_nop 0")
        A(f"v_add_u32 v{VXE}, 128, v{VXE}", f"v_add_u32 v{VXO}, 128, v{VXO}", f"v_add_u32 v{VW}, {64*3072}, v{VW}",
          f"s_add_u32 s{S_SLOT}, s{S_SLOT}, 32768", f"s_and_b32 s{S_SLOT}, s{S_SLOT}, 0x1ffff")
    L0=A.newlabel('P1HP')
    A(f"s_mov_b32 s{S_CNT}, 0"); A.label(L0); issue()
    A(f"s_add_u32 s{S_CNT}, s{S_CNT}, 1", f"s_cmp_lt_u32 s{S_CNT}, 3", f"s_cbranch_scc1 {L0}")
    stamp(A,cfg,1)
    L1=A.newlabel('P1HL')
    A(f"s_mov_b32 s{S_CNT}, 0"); A.label(L1)
    A("s_waitcnt vmcnt(16)", "s_barrier"); issue()
    A(f"s_add_u32 s{S_CNT}, s{S_CNT}, 1", f"s_cmp_lt_u32 s{S_CNT}, 5", f"s_cbranch_scc1 {L1}")
    A("s_waitcnt vmcnt(16)", "s_barrier", "s_waitcnt vmcnt(8)", "s_barrier", "s_waitcnt vmcnt(0)", "s_barrier")
    A.label(L_done)


def phase2(A,cfg):
    sc=" sc1" if cfg.sc1 else ""
    KOFF=cfg.p2_koff; VOFF=KOFF+16384
    Q=4; K=8
    S=44
    MF=188; ML=204
    O=220
    T=236
    CFULL=S+32; P=S+48; VF=S+64
    LD=S+96
    S_J=60;S_T0=61;S_HEAD=62
    A(f"s_lshl_b32 s{S_J}, s{S_TG}, 3", f"s_add_u32 s{S_J}, s{S_J}, s{S_WAVE}", f"s_mov_b32 s{S_HEAD}, s{S_LOCAL}")
    A(f"s_lshl_b32 s63, s{S_HEAD}, 16")
    A(f"s_add_u32 s64, s63, {hex(WS_K)}", f"s_add_u32 s{SRD0}, s{P_WS}, s64", f"s_addc_u32 s{SRD0+1}, s{P_WS+1}, 0",
      f"s_mov_b32 s{SRD0+2}, 0x10000", f"s_mov_b32 s{SRD0+3}, 0x20000")
    A(f"s_add_u32 s64, s63, {hex(WS_V)}", f"s_add_u32 s{SRD1}, s{P_WS}, s64", f"s_addc_u32 s{SRD1+1}, s{P_WS+1}, 0",
      f"s_mov_b32 s{SRD1+2}, 0x10000", f"s_mov_b32 s{SRD1+3}, 0x20000")
    srd(A,SRD2,P_WS,WS_SIZE)
    A(f"s_lshl_b32 s64, s{S_TG}, 3", f"s_lshl_b32 s65, s{S_WAVE}, 1", "s_add_u32 s64, s64, s65", "s_sub_u32 s64, s64, 8",
      "s_lshl_b32 s64, s64, 10",
      f"v_lshlrev_b32 v{T}, 4, v{V_LANE}", f"v_add_u32 v{T+1}, s64, v{T}")
    A(f"buffer_load_dwordx4 {vr(LD,4)}, v{T+1}, s[{SRD0}:{SRD0+3}], 0 offen{sc}",
      f"buffer_load_dwordx4 {vr(LD+4,4)}, v{T+1}, s[{SRD0}:{SRD0+3}], 0 offen offset:1024{sc}",
      f"buffer_load_dwordx4 {vr(LD+8,4)}, v{T+1}, s[{SRD1}:{SRD1+3}], 0 offen{sc}",
      f"buffer_load_dwordx4 {vr(LD+12,4)}, v{T+1}, s[{SRD1}:{SRD1+3}], 0 offen offset:1024{sc}")
    A(f"s_lshl_b32 s65, s{S_J}, 10", "s_add_u32 s65, s65, s63", f"s_add_u32 s66, s65, {hex(WS_Q)}",
      f"buffer_load_dwordx4 {vr(Q,4)}, v{T}, s[{SRD2}:{SRD2+3}], s66 offen{sc}")
    A(f"v_and_b32 v{T+2}, 31, v{V_LANE}", f"v_lshrrev_b32 v{T+3}, 5, v{V_LANE}",
      f"v_lshlrev_b32 v{T+4}, 2, v{T+3}", f"v_sub_u32 v{T+4}, v{T+2}, v{T+4}",
      f"v_mov_b32 v{T+5}, {hx(-1e30)}", f"v_mov_b32 v{T+6}, 0")
    for r in range(16):
        b0=8*(r//4)+r%4
        A(f"v_cmp_le_i32 s[{68+2*r}:{69+2*r}], {b0}, v{T+4}")
    for r in range(16):
        A(f"v_cndmask_b32 v{ML+r}, v{T+5}, v{T+6}, s[{68+2*r}:{69+2*r}]",
          f"v_cndmask_b32 v{MF+r}, v{T+6}, v{T+5}, s[{68+2*r}:{69+2*r}]")
    A(f"s_lshl_b32 s64, s{S_WAVE}, 11", f"s_add_u32 s64, s64, {KOFF}", f"v_add_u32 v{T+7}, s64, v{T}",
      f"s_mul_i32 s64, s{S_WAVE}, {4*528}", f"s_add_u32 s64, s64, {VOFF}",
      f"v_mul_u32_u24 v{T+8}, 528, v{T+3}", f"v_lshl_add_u32 v{T+8}, v{T+2}, 4, v{T+8}", f"v_add_u32 v{T+8}, s64, v{T+8}")
    A(f"v_mov_b32 v{T+10}, 0x3f803f80", f"v_mov_b32 v{T+11}, 0x3f803f80", f"v_mov_b32 v{T+12}, 0x3f803f80", f"v_mov_b32 v{T+13}, 0x3f803f80",
      f"v_mul_u32_u24 v{T+9}, 528, v{T+2}", f"v_add_u32 v{T+9}, {VOFF+512}, v{T+9}")
    A(f"ds_write_b128 v{T+9}, {vr(T+10,4)}")
    A("s_waitcnt vmcnt(1)")
    A(f"ds_write_b128 v{T+7}, {vr(LD,4)}", f"ds_write_b128 v{T+7}, {vr(LD+4,4)} offset:1024",
      f"ds_write_b128 v{T+8}, {vr(LD+8,4)}", f"ds_write_b128 v{T+8}, {vr(LD+12,4)} offset:1056")
    A(f"s_sub_u32 s{S_T0}, 8, s{S_WAVE}", f"s_cmp_eq_u32 s{S_TG}, 0", f"s_cselect_b32 s{S_T0}, s{S_T0}, 0")
    KA=T+14; VA=T+15
    A(f"s_lshl_b32 s64, s{S_WAVE}, 10", f"s_add_u32 s64, s64, {KOFF}", f"v_add_u32 v{KA}, s64, v{T}",
      f"v_lshlrev_b32 v{VA}, 8, v{T+3}", f"v_lshl_add_u32 v{VA}, v{T+2}, 4, v{VA}",
      f"v_cmp_gt_u32 vcc, 16, v{T+2}", f"v_mov_b32 v{T+9}, 512", "s_nop 0",
      f"v_cndmask_b32 v{VA}, v{T+9}, v{VA}, vcc",
      f"s_mul_i32 s64, s{S_WAVE}, {2*528}", f"s_add_u32 s64, s64, {VOFF}", f"v_add_u32 v{VA}, s64, v{VA}")
    A("s_waitcnt lgkmcnt(0)", "s_barrier")
    stamp(A,cfg,3)
    for t in range(9): A(f"ds_read_b128 {vr(K+4*t,4)}, v{KA} offset:{t*1024}")
    Lp=A.newlabel('P2p')
    A(f"s_cmp_eq_u32 s{S_T0}, 0", f"s_cbranch_scc1 {Lp}")
    for r in range(128): A(f"v_mov_b32 v{S+r}, v{T+5}")
    A.label(Lp)
    A("s_waitcnt vmcnt(0) lgkmcnt(0)")
    MX=T+9
    A(f"v_mov_b32 v{MX}, v{T+5}", f"v_mov_b32 v{MX+1}, v{T+5}")
    def M1(t):
        c = vr(MF,16) if t==0 else (vr(ML,16) if t==8 else "0")
        l=A.newlabel('P2m')
        if t<8: A(f"s_cmp_gt_u32 s{S_T0}, {t}", f"s_cbranch_scc1 {l}")
        A(f"v_mfma_f32_32x32x16_bf16 {vr(S+16*t,16)}, {vr(K+4*t,4)}, {vr(Q,4)}, {c}")
        if t<8: A.label(l)
    def X1(t):
        for j in range(8):
            m=MX+(j&1)
            A(f"v_max3_f32 v{m}, v{S+16*t+2*j}, v{S+16*t+2*j+1}, v{m}")
    M1(0); M1(1)
    A.nop(6)
    for t in range(9):
        if t+2<9: M1(t+2)
        else: A.nop(1)
        X1(t)
    A(f"v_max_f32 v{MX}, v{MX}, v{MX+1}", f"v_mov_b32 v{MX+1}, v{MX}"); A.nop(2)
    A(f"v_permlane32_swap_b32 v{MX}, v{MX+1}"); A.nop(1)
    A(f"v_max_f32 v{MX}, v{MX}, v{MX+1}")
    stamp(A,cfg,4)
    for r in range(16): A(f"v_sub_f32 v{CFULL+r}, 0, v{MX}")
    for r in range(16): A(f"v_sub_f32 v{MF+r}, v{MF+r}, v{MX}")
    for r in range(16): A(f"v_sub_f32 v{ML+r}, v{ML+r}, v{MX}")
    for r in range(32): A(f"v_mov_b32 v{S+r}, v{T+5}")
    for r in range(16): A(f"v_mov_b32 v{O+r}, 0")
    def M2(t):
        c = vr(MF,16) if t==0 else (vr(ML,16) if t==8 else vr(CFULL,16))
        l=A.newlabel('P2n')
        if t<8: A(f"s_cmp_gt_u32 s{S_T0}, {t}", f"s_cbranch_scc1 {l}")
        A(f"v_mfma_f32_32x32x16_bf16 {vr(S+16*(t&1),16)}, {vr(K+4*t,4)}, {vr(Q,4)}, {c}")
        if t<8: A.label(l)
    def VR(t):
        b=VF+8*(t&1)
        A(f"ds_read_b128 {vr(b,4)}, v{VA} offset:{(2*t)*528}", f"ds_read_b128 {vr(b+4,4)}, v{VA} offset:{(2*t+1)*528}")
    VR(0)
    M2(0)
    A.nop(10)
    for t in range(9):
        if t+1<9:
            VR(t+1); M2(t+1)
        sb=S+16*(t&1); pb=P+8*(t&1); vb=VF+8*(t&1)
        EB=S+80
        for r in range(16): A(f"v_exp_f32 v{EB+r}, v{sb+r}")
        for j in range(8): A(f"v_cvt_pk_bf16_f32 v{pb+j}, v{EB+2*j}, v{EB+2*j+1}")
        A(f"s_waitcnt lgkmcnt({2 if t+1<9 else 0})")
        A.nop(1)
        A(f"v_mfma_f32_32x32x16_bf16 {vr(O,16)}, {vr(vb,4)}, {vr(pb,4)}, {vr(O,16)}",
          f"v_mfma_f32_32x32x16_bf16 {vr(O,16)}, {vr(vb+4,4)}, {vr(pb+4,4)}, {vr(O,16)}")
    A.nop(12)
    A(f"v_rcp_f32 v{T+9}, v{O+8}", "s_nop 0")
    for r in range(8): A(f"v_mul_f32 v{O+r}, v{O+r}, v{T+9}")
    for j in range(4): A(f"v_cvt_pk_bf16_f32 v{P+j}, v{O+2*j}, v{O+2*j+1}")
    A(f"s_lshl_b32 s64, s{S_J}, 15", f"s_lshl_b32 s65, s{S_HEAD}, 10", "s_add_u32 s64, s64, s65", f"s_add_u32 s64, s64, {hex(WS_O)}",
      f"buffer_store_dwordx4 {vr(P,4)}, v{T}, s[{SRD2}:{SRD2+3}], s64 offen{sc}")

def w128_voff(A,dst,T,rowstride):
    A(f"v_lshrrev_b32 v{T}, 3, v{V_LANE}", f"v_and_b32 v{T+1}, 7, v{V_LANE}",
      f"v_bfe_u32 v{T+2}, v{V_LANE}, 4, 1", f"v_lshlrev_b32 v{T+2}, 2, v{T+2}",
      f"v_xor_b32 v{T+1}, v{T+1}, v{T+2}", f"v_lshlrev_b32 v{T+1}, 4, v{T+1}",
      f"v_mul_u32_u24 v{dst}, {rowstride}, v{T}", f"v_add_u32 v{dst}, v{dst}, v{T+1}")
def w128_rdaddr(A,d0,d1,T):
    A(f"v_and_b32 v{T}, 15, v{V_LANE}", f"v_lshrrev_b32 v{T+1}, 5, v{V_LANE}",
      f"v_lshrrev_b32 v{T+2}, 2, v{T}", f"v_lshl_add_u32 v{T+2}, v{T+1}, 2, v{T+2}", f"v_lshlrev_b32 v{T+2}, 7, v{T+2}",
      f"v_lshrrev_b32 v{T+3}, 3, v{T}", f"v_lshl_add_u32 v{T+2}, v{T+3}, 6, v{T+2}",
      f"v_bfe_u32 v{T+3}, v{V_LANE}, 4, 1", f"v_lshl_add_u32 v{T+2}, v{T+3}, 5, v{T+2}",
      f"v_and_b32 v{T+3}, 3, v{T}", f"v_lshl_add_u32 v{d0}, v{T+3}, 3, v{T+2}",
      f"v_xor_b32 v{d1}, 64, v{d0}")

H_RES=240

def reduce_pair(A,acc_keep,acc_send,redbase,T,RD):
    A(f"s_lshl_b32 s70, s{S_WAVE}, 12", f"s_add_u32 s70, s70, {redbase}",
      f"v_lshlrev_b32 v{T}, 4, v{V_LANE}", f"v_add_u32 v{T+1}, s70, v{T}",
      f"s_xor_b32 s71, s{S_WAVE}, 2", f"s_lshl_b32 s71, s71, 12", f"s_add_u32 s71, s71, {redbase}", f"v_add_u32 v{T+2}, s71, v{T}")
    for q in range(4): A(f"ds_write_b128 v{T+1}, {vr(acc_send+4*q,4)} offset:{q*1024}")
    A("s_waitcnt lgkmcnt(0)", "s_barrier")
    for q in range(4): A(f"ds_read_b128 {vr(RD+4*q,4)}, v{T+2} offset:{q*1024}")
    A("s_waitcnt lgkmcnt(0)")
    for r in range(16): A(f"v_add_f32 v{acc_keep+r}, v{acc_keep+r}, v{RD+r}")

def phase3(A,cfg):
    sc=" sc1" if cfg.sc1 else ""
    WOFF=cfg.p3_woff; RED=cfg.p3_red
    L_help=A.newlabel('P3H'); L_done=A.newlabel('P3D')
    S_RB=60;S_CT=61
    A(f"s_and_b32 s{S_RB}, s{S_LOCAL}, 3", f"s_lshl_b32 s62, s{S_TG}, 2", f"s_add_u32 s{S_RB}, s{S_RB}, s62",
      f"s_lshr_b32 s{S_CT}, s{S_LOCAL}, 2")
    A(f"s_cmp_ge_u32 s{S_WAVE}, 4", f"s_cbranch_scc1 {L_help}")
    ACC=2; OF=36
    WF=100
    WA0=116;WA1=117;XR=120
    T=128; RD=144
    S_TH=62;S_KH=63;S_R32=64
    A(f"s_and_b32 s{S_TH}, s{S_WAVE}, 1", f"s_lshr_b32 s{S_KH}, s{S_WAVE}, 1",
      f"s_lshl_b32 s{S_R32}, s{S_RB}, 1", f"s_add_u32 s{S_R32}, s{S_R32}, s{S_TH}")
    srd(A,SRD2,P_WS,WS_SIZE); srd(A,SRD3,P_X,2048*1024)
    A(f"v_and_b32 v{T}, 31, v{V_LANE}", f"v_lshrrev_b32 v{T+1}, 5, v{V_LANE}",
      f"v_lshlrev_b32 v{T+2}, 10, v{T}", f"v_lshl_add_u32 v{T+2}, v{T+1}, 3, v{T+2}",
      f"s_lshl_b32 s65, s{S_R32}, 15", f"s_lshl_b32 s66, s{S_CT}, 7", "s_add_u32 s65, s65, s66", f"s_lshl_b32 s66, s{S_KH}, 6", "s_add_u32 s65, s65, s66")
    for g in range(4): A(f"buffer_load_dwordx2 {vr(XR+2*g,2)}, v{T+2}, s[{SRD3}:{SRD3+3}], s65 offen offset:{g*16}")
    A(f"v_lshlrev_b32 v{T+3}, 4, v{V_LANE}",
      f"s_lshl_b32 s65, s{S_R32}, 15", f"s_lshl_b32 s66, s{S_KH}, 14", "s_add_u32 s65, s65, s66", f"s_add_u32 s65, s65, {hex(WS_O)}")
    for i in range(16):
        if i%4==0 and i: A("s_add_u32 s65, s65, 4096")
        A(f"buffer_load_dwordx4 {vr(OF+4*i,4)}, v{T+3}, s[{SRD2}:{SRD2+3}], s65 offen offset:{(i%4)*1024}{sc}")
    w128_rdaddr(A,WA0,WA1,T+4)
    A(f"s_lshl_b32 s66, s{S_KH}, 15", f"s_add_u32 s66, s66, {WOFF}", f"v_add_u32 v{WA0}, s66, v{WA0}", f"v_add_u32 v{WA1}, s66, v{WA1}")
    for r in range(32): A(f"v_mov_b32 v{ACC+r}, 0")
    def reads(ks):
        b=WF+8*(ks&1)
        for cb,wa in ((0,WA0),(1,WA1)):
            A(f"ds_read_b64_tr_b16 {vr(b+4*cb,2)}, v{wa} offset:{ks*2048}", f"ds_read_b64_tr_b16 {vr(b+4*cb+2,2)}, v{wa} offset:{ks*2048+1024}")
    for ks in range(16):
        if ks%4==0:
            A("s_barrier"); reads(ks)
        nxt = (ks+1)%4!=0
        if nxt: reads(ks+1)
        A(f"s_waitcnt vmcnt({15-ks}) lgkmcnt({4 if nxt else 0})")
        b=WF+8*(ks&1)
        for cb in range(2):
            A(f"v_mfma_f32_32x32x16_bf16 {vr(ACC+16*cb,16)}, {vr(b+4*cb,4)}, {vr(OF+4*ks,4)}, {vr(ACC+16*cb,16)}")
    A.nop(12)
    Lk=A.newlabel('P3k'); Lj=A.newlabel('P3j')
    A(f"s_cmp_eq_u32 s{S_KH}, 0", f"s_cbranch_scc1 {Lk}")
    for r in range(16): A(f"v_mov_b32 v{RD+r}, v{ACC+r}", f"v_mov_b32 v{ACC+r}, v{ACC+16+r}", f"v_mov_b32 v{ACC+16+r}, v{RD+r}")
    A.label(Lk)
    reduce_pair(A,ACC,ACC+16,RED,T+4,RD)
    for g in range(4):
        for d in range(2):
            x=XR+2*g+d; r=4*g+2*d
            A(f"v_lshlrev_b32 v{T+8}, 16, v{x}", f"v_and_b32 v{T+9}, 0xffff0000, v{x}",
              f"v_add_f32 v{ACC+r}, v{ACC+r}, v{T+8}", f"v_add_f32 v{ACC+r+1}, v{ACC+r+1}, v{T+9}")
    for j in range(8): A(f"v_cvt_pk_bf16_f32 v{H_RES+j}, v{ACC+2*j}, v{ACC+2*j+1}")
    A(f"s_lshl_b32 s65, s{S_R32}, 15", f"s_lshl_b32 s66, s{S_CT}, 12", "s_add_u32 s65, s65, s66", f"s_lshl_b32 s66, s{S_KH}, 11", "s_add_u32 s65, s65, s66",
      f"s_add_u32 s65, s65, {hex(WS_H)}",
      f"buffer_store_dwordx4 {vr(H_RES,4)}, v{T+3}, s[{SRD2}:{SRD2+3}], s65 offen{sc}",
      f"buffer_store_dwordx4 {vr(H_RES+4,4)}, v{T+3}, s[{SRD2}:{SRD2+3}], s65 offen offset:1024{sc}")
    SU=T+8;SQ=T+9
    A(f"v_mov_b32 v{SU}, 0", f"v_mov_b32 v{SQ}, 0", f"v_mov_b32 v{T+10}, 0x3f803f80")
    for j in range(8): A(f"v_dot2c_f32_bf16 v{SU}, v{T+10}, v{H_RES+j}", f"v_dot2c_f32_bf16 v{SQ}, v{H_RES+j}, v{H_RES+j}")
    A.nop(3)
    for r in (SU,SQ):
        A(f"v_mov_b32 v{T+11}, v{r}"); A.nop(2); A(f"v_permlane32_swap_b32 v{r}, v{T+11}"); A.nop(1); A(f"v_add_f32 v{r}, v{r}, v{T+11}")
    A(f"s_lshl_b32 s65, s{S_R32}, 12", f"s_lshl_b32 s66, s{S_CT}, 9", "s_add_u32 s65, s65, s66", f"s_lshl_b32 s66, s{S_KH}, 8", "s_add_u32 s65, s65, s66",
      f"s_add_u32 s65, s65, {hex(WS_ST)}", f"v_lshlrev_b32 v{T+11}, 3, v{T}",
      f"buffer_store_dwordx2 {vr(SU,2)}, v{T+11}, s[{SRD2}:{SRD2+3}], s65 offen{sc}")
    A(f"s_branch {L_done}")
    A.label(L_help)
    srd(A,SRD0,P_WO,512*1024)
    VW=2
    w128_voff(A,VW,8,1024)
    A(f"s_lshr_b32 s62, s{S_HW}, 1", f"s_lshl_b32 s62, s62, 8", f"s_and_b32 s63, s{S_HW}, 1", "s_lshl_b32 s63, s63, 5", "s_add_u32 s62, s62, s63")
    A(f"s_lshl_b32 s63, s62, 10", f"s_lshl_b32 s64, s{S_CT}, 7", "s_add_u32 s63, s63, s64")
    A(f"s_lshl_b32 s64, s62, 7", f"s_add_u32 s64, s64, {WOFF}")
    for st in range(4):
        for i in range(4):
            A(f"s_add_u32 m0, s64, {st*8192+i*1024}", f"s_add_u32 s65, s63, {st*65536+i*8192}",
              f"buffer_load_dwordx4 v{VW}, s[{SRD0}:{SRD0+3}], s65 offen lds")
    for st in range(4): A(f"s_waitcnt vmcnt({12-4*st})", "s_barrier")
    A("s_barrier")
    A.label(L_done)

K0=-2*0.7978845608028654*1.4426950408889634
K1=K0*0.044715
def phase4(A,cfg):
    sc=" sc1" if cfg.sc1 else ""
    WOFF=cfg.p4_woff; SCR=cfg.p4_scr
    L_help=A.newlabel('P4H'); L_done=A.newlabel('P4D'); L_idle=A.newlabel('P4I')
    S_RB=60;S_CT=61
    A(f"s_and_b32 s{S_RB}, s{S_LOCAL}, 1", f"s_lshl_b32 s62, s{S_TG}, 1", f"s_add_u32 s{S_RB}, s{S_RB}, s62",
      f"s_lshr_b32 s{S_CT}, s{S_LOCAL}, 1")
    A(f"s_cmp_ge_u32 s{S_CT}, 15", f"s_cbranch_scc1 {L_done}")
    A(f"s_cmp_ge_u32 s{S_WAVE}, 4", f"s_cbranch_scc1 {L_help}")
    ACC=2
    HF=52
    WF=180
    WA0=204;WA1=205;ONES=206;CS=207
    B1=210
    T=234
    T2=248
    S_R32=62
    A(f"s_lshl_b32 s{S_R32}, s{S_RB}, 2", f"s_add_u32 s{S_R32}, s{S_R32}, s{S_WAVE}")
    srd(A,SRD2,P_WS,WS_SIZE); srd(A,SRD3,P_B1,1376*2)
    A(f"v_and_b32 v{T}, 31, v{V_LANE}", f"v_lshrrev_b32 v{T+1}, 5, v{V_LANE}", f"v_lshlrev_b32 v{T+2}, 4, v{V_LANE}")
    A(f"v_lshlrev_b32 v{T+3}, 3, v{T}", f"v_lshl_add_u32 v{T+3}, v{T+1}, 8, v{T+3}",
      f"s_lshl_b32 s65, s{S_R32}, 12", f"s_add_u32 s65, s65, {hex(WS_ST)}")
    for i in range(8): A(f"buffer_load_dwordx2 {vr(WF+2*i,2)}, v{T+3}, s[{SRD2}:{SRD2+3}], s65 offen offset:{i*512}{sc}")
    A(f"v_lshlrev_b32 v{T+3}, 3, v{T+1}", f"s_mul_i32 s66, s{S_CT}, 192")
    for fb in range(3):
        for g in range(4):
            A(f"buffer_load_dwordx2 {vr(B1+8*fb+2*g,2)}, v{T+3}, s[{SRD3}:{SRD3+3}], s66 offen offset:{fb*64+g*16}")
    A(f"s_lshl_b32 s65, s{S_R32}, 15", f"s_add_u32 s65, s65, {hex(WS_H)}")
    for i in range(32):
        if i%4==0 and i: A("s_add_u32 s65, s65, 4096")
        A(f"buffer_load_dwordx4 {vr(HF+4*i,4)}, v{T+2}, s[{SRD2}:{SRD2+3}], s65 offen offset:{(i%4)*1024}{sc}")
    SU=T2;SQ=T2+1
    A("s_waitcnt vmcnt(44)")
    A(f"v_add_f32 v{SU}, v{WF}, v{WF+2}", f"v_add_f32 v{SQ}, v{WF+1}, v{WF+3}")
    for i in range(2,8): A(f"v_add_f32 v{SU}, v{SU}, v{WF+2*i}", f"v_add_f32 v{SQ}, v{SQ}, v{WF+2*i+1}")
    for r in (SU,SQ):
        A(f"v_mov_b32 v{T2+2}, v{r}"); A.nop(2); A(f"v_permlane32_swap_b32 v{r}, v{T2+2}"); A.nop(1); A(f"v_add_f32 v{r}, v{r}, v{T2+2}")
    RSTD=T2+2;MR=T2+3
    A(f"v_mul_f32 v{SU}, {hx(1/512)}, v{SU}", f"v_mul_f32 v{RSTD}, {hx(1/512)}, v{SQ}",
      f"v_fma_f32 v{RSTD}, -v{SU}, v{SU}, v{RSTD}", f"v_add_f32 v{RSTD}, {hx(1e-5)}, v{RSTD}",
      f"v_rsq_f32 v{RSTD}, v{RSTD}", "s_nop 0", f"v_mul_f32 v{MR}, v{SU}, v{RSTD}")
    A(f"v_and_b32 v{T+3}, 15, v{V_LANE}", f"v_lshrrev_b32 v{T+4}, 2, v{T+3}", f"v_lshl_add_u32 v{T+4}, v{T+1}, 2, v{T+4}",
      f"v_mul_u32_u24 v{T+4}, 192, v{T+4}", f"v_bfe_u32 v{T+5}, v{V_LANE}, 4, 1", f"v_lshl_add_u32 v{T+4}, v{T+5}, 5, v{T+4}",
      f"v_and_b32 v{T+5}, 3, v{T+3}", f"v_lshl_add_u32 v{T+4}, v{T+5}, 3, v{T+4}",
      f"v_add_u32 v{WA0}, {WOFF}, v{T+4}", f"v_add_u32 v{WA1}, {WOFF+49152}, v{T+4}",
      f"v_mov_b32 v{ONES}, 0x3f803f80")
    for r in range(48): A(f"v_mov_b32 v{ACC+r}, 0")
    for r in range(3): A(f"v_mov_b32 v{CS+r}, 0")
    def reads(ks):
        b=WF+12*(ks&1); wa=WA0 if ks<16 else WA1; o=(ks%16)*3072
        for fb in range(3):
            A(f"ds_read_b64_tr_b16 {vr(b+4*fb,2)}, v{wa} offset:{o+fb*64}", f"ds_read_b64_tr_b16 {vr(b+4*fb+2,2)}, v{wa} offset:{o+fb*64+1536}")
    for ks in range(32):
        if ks%8==0:
            A("s_barrier"); reads(ks)
        nxt=(ks+1)%8!=0
        if nxt: reads(ks+1)
        A(f"s_waitcnt vmcnt({31-ks}) lgkmcnt({6 if nxt else 0})")
        b=WF+12*(ks&1)
        for fb in range(3):
            A(f"v_mfma_f32_32x32x16_bf16 {vr(ACC+16*fb,16)}, {vr(b+4*fb,4)}, {vr(HF+4*ks,4)}, {vr(ACC+16*fb,16)}")
            for j in range(4): A(f"v_dot2c_f32_bf16 v{CS+fb}, v{ONES}, v{b+4*fb+j}")
    stamp(A,cfg,5)
    A.nop(4)
    for r in range(3):
        A(f"v_mov_b32 v{T+3}, v{CS+r}"); A.nop(2); A(f"v_permlane32_swap_b32 v{CS+r}, v{T+3}"); A.nop(1); A(f"v_add_f32 v{CS+r}, v{CS+r}, v{T+3}")
    A(f"s_mul_i32 s66, s{S_WAVE}, 384", f"s_add_u32 s66, s66, {SCR}", f"v_lshl_add_u32 v{T+3}, v{T}, 2, s66")
    for fb in range(3): A(f"ds_write_b32 v{T+3}, v{CS+fb} offset:{fb*128}")
    A(f"v_lshl_add_u32 v{T+4}, v{T+1}, 4, s66", "s_waitcnt lgkmcnt(0)")
    CSR=HF
    for fb in range(3):
        for g in range(4): A(f"ds_read_b128 {vr(CSR+16*fb+4*g,4)}, v{T+4} offset:{fb*128+g*32}")
    A("s_waitcnt lgkmcnt(0)")
    A(f"s_mov_b32 s67, {hx(K1)}", f"s_mov_b32 s68, {hx(K0)}")
    PK=HF+48; TT=HF+64
    A(f"s_lshl_b32 s65, s{S_R32}, 0", f"s_mul_i32 s65, s65, {86*1024}", f"s_mul_i32 s66, s{S_CT}, 6144", "s_add_u32 s65, s65, s66", f"s_add_u32 s65, s65, {hex(WS_G)}")
    Lskip=A.newlabel('P4s')
    for fb in range(3):
        if fb==1: A(f"s_cmp_eq_u32 s{S_CT}, 14", f"s_cbranch_scc1 {L_done}")
        for r in range(16):
            a=ACC+16*fb+r; c=CSR+16*fb+r; bb=B1+8*fb+r//2
            t0=TT+(r%4)*4
            if r%2==0: A(f"v_lshlrev_b32 v{t0}, 16, v{bb}")
            else: A(f"v_and_b32 v{t0}, 0xffff0000, v{bb}")
            A(f"v_fma_f32 v{t0}, -v{MR}, v{c}, v{t0}",
              f"v_fma_f32 v{a}, v{a}, v{RSTD}, v{t0}",
              f"v_mul_f32 v{t0+1}, v{a}, v{a}",
              f"v_mov_b32 v{t0+2}, s68",
              f"v_fma_f32 v{t0+1}, v{t0+1}, s67, v{t0+2}",
              f"v_mul_f32 v{t0+1}, v{a}, v{t0+1}",
              f"v_exp_f32 v{t0+1}, v{t0+1}", "s_nop 0",
              f"v_add_f32 v{t0+1}, 1.0, v{t0+1}",
              f"v_rcp_f32 v{t0+1}, v{t0+1}", "s_nop 0",
              f"v_mul_f32 v{a}, v{a}, v{t0+1}")
        p=PK+8*(fb&1)
        for j in range(8): A(f"v_cvt_pk_bf16_f32 v{p+j}, v{ACC+16*fb+2*j}, v{ACC+16*fb+2*j+1}")
        if fb==2: A("s_add_u32 s65, s65, 4096")
        A(f"buffer_store_dwordx4 {vr(p,4)}, v{T+2}, s[{SRD2}:{SRD2+3}], s65 offen offset:{(fb&1)*2048}{sc}",
          f"buffer_store_dwordx4 {vr(p+4,4)}, v{T+2}, s[{SRD2}:{SRD2+3}], s65 offen offset:{(fb&1)*2048+1024}{sc}")
    A(f"s_branch {L_done}")
    A.label(L_help)
    srd(A,SRD0,P_W1,512*2752)
    VW=2;T=8
    for sub in range(3):
        A(f"v_add_u32 v{T}, {sub*64}, v{V_LANE}", f"v_mul_u32_u24 v{T+1}, 171, v{T}", f"v_lshrrev_b32 v{T+1}, 11, v{T+1}",
          f"v_mul_u32_u24 v{T+2}, 12, v{T+1}", f"v_sub_u32 v{T+2}, v{T}, v{T+2}",
          f"v_mul_u32_u24 v{VW+sub}, 2752, v{T+1}", f"v_lshl_add_u32 v{VW+sub}, v{T+2}, 4, v{VW+sub}")
    A(f"s_mul_i32 s62, s{S_CT}, 192", f"s_mul_i32 s63, s{S_HW}, {2*16*2752}", "s_add_u32 s62, s62, s63",
      f"s_mul_i32 s64, s{S_HW}, 6144", f"s_add_u32 s64, s64, {WOFF}")
    for st in range(4):
        for gi in range(2):
            for sub in range(3):
                A(f"s_add_u32 m0, s64, {st*24576+gi*3072+sub*1024}", f"s_add_u32 s65, s62, {(st*8+gi)*16*2752}",
                  f"buffer_load_dwordx4 v{VW+sub}, s[{SRD0}:{SRD0+3}], s65 offen lds")
    for st in range(4): A(f"s_waitcnt vmcnt({18-6*st})", "s_barrier")
    A.label(L_done)

def phase5(A,cfg):
    sc=" sc1" if cfg.sc1 else ""
    L_help=A.newlabel('P5H'); L_done=A.newlabel('P5D')
    S_RB=60;S_CT=61
    A(f"s_and_b32 s{S_RB}, s{S_LOCAL}, 3", f"s_lshl_b32 s62, s{S_TG}, 2", f"s_add_u32 s{S_RB}, s{S_RB}, s62",
      f"s_lshr_b32 s{S_CT}, s{S_LOCAL}, 2")
    A(f"s_cmp_ge_u32 s{S_WAVE}, 4", f"s_cbranch_scc1 {L_help}")
    ACC=2
    GF=36
    WF=208
    WA=224
    B2=228
    T=236
    T2=248
    S_TH=62;S_KH=63;S_R32=64
    A(f"s_and_b32 s{S_TH}, s{S_WAVE}, 1", f"s_lshr_b32 s{S_KH}, s{S_WAVE}, 1",
      f"s_lshl_b32 s{S_R32}, s{S_RB}, 1", f"s_add_u32 s{S_R32}, s{S_R32}, s{S_TH}")
    srd(A,SRD2,P_WS,WS_SIZE); srd(A,SRD3,P_B2,1024); srd(A,SRD1,P_OUT,2048*1024)
    A(f"v_and_b32 v{T}, 31, v{V_LANE}", f"v_lshrrev_b32 v{T+1}, 5, v{V_LANE}", f"v_lshlrev_b32 v{T+2}, 4, v{V_LANE}")
    A(f"v_lshlrev_b32 v{T+3}, 3, v{T+1}", f"s_lshl_b32 s65, s{S_CT}, 7", f"s_lshl_b32 s66, s{S_KH}, 6", "s_add_u32 s65, s65, s66")
    for g in range(4): A(f"buffer_load_dwordx2 {vr(B2+2*g,2)}, v{T+3}, s[{SRD3}:{SRD3+3}], s65 offen offset:{g*16}")
    if not cfg.persist:
        A(f"s_lshl_b32 s65, s{S_R32}, 15", f"s_lshl_b32 s66, s{S_CT}, 12", "s_add_u32 s65, s65, s66", f"s_lshl_b32 s66, s{S_KH}, 11", "s_add_u32 s65, s65, s66",
          f"s_add_u32 s65, s65, {hex(WS_H)}",
          f"buffer_load_dwordx4 {vr(H_RES,4)}, v{T+2}, s[{SRD2}:{SRD2+3}], s65 offen",
          f"buffer_load_dwordx4 {vr(H_RES+4,4)}, v{T+2}, s[{SRD2}:{SRD2+3}], s65 offen offset:1024")
    A(f"s_mul_i32 s65, s{S_R32}, {86*1024}", f"s_mul_i32 s66, s{S_KH}, {43*1024}", "s_add_u32 s65, s65, s66", f"s_add_u32 s65, s65, {hex(WS_G)}")
    D=12
    def gload(i):
        A(f"s_add_u32 s67, s65, {(i//4)*4096}") if i%4==0 else None
        A(f"buffer_load_dwordx4 {vr(GF+4*i,4)}, v{T+2}, s[{SRD2}:{SRD2+3}], s67 offen offset:{(i%4)*1024}{sc}")
    for i in range(D): gload(i)
    w128_rdaddr(A,WA,WA+1,T2)
    A(f"s_mul_i32 s66, s{S_KH}, {40*2048}", f"v_add_u32 v{WA}, s66, v{WA}", f"v_add_u32 v{WA+1}, s66, v{WA+1}",
      f"v_add_u32 v{WA+2}, {32*2048}, v{WA}", f"v_add_u32 v{WA+3}, {32*2048}, v{WA+1}")
    for r in range(32): A(f"v_mov_b32 v{ACC+r}, 0")
    def slot(ks): return ks if ks<40 else ks-40
    def reads(ks):
        b=WF+8*(ks&1); s=slot(ks); hi=2 if s>=32 else 0; o=(s%32)*2048
        for cb in range(2):
            A(f"ds_read_b64_tr_b16 {vr(b+4*cb,2)}, v{WA+hi+cb} offset:{o}", f"ds_read_b64_tr_b16 {vr(b+4*cb+2,2)}, v{WA+hi+cb} offset:{o+1024}")
    for ks in range(43):
        if ks%8==0:
            A("s_barrier"); reads(ks)
        nxt=(ks+1)%8!=0 and ks+1<43
        if nxt: reads(ks+1)
        if ks+D<43: gload(ks+D)
        out=min(D,42-ks)
        A(f"s_waitcnt vmcnt({out}) lgkmcnt({4 if nxt else 0})")
        b=WF+8*(ks&1)
        for cb in range(2):
            A(f"v_mfma_f32_32x32x16_bf16 {vr(ACC+16*cb,16)}, {vr(b+4*cb,4)}, {vr(GF+4*ks,4)}, {vr(ACC+16*cb,16)}")
    stamp(A,cfg,6)
    A.nop(12)
    RD=GF
    Lk=A.newlabel('P5k')
    A(f"s_cmp_eq_u32 s{S_KH}, 0", f"s_cbranch_scc1 {Lk}")
    for r in range(16): A(f"v_mov_b32 v{RD+r}, v{ACC+r}", f"v_mov_b32 v{ACC+r}, v{ACC+16+r}", f"v_mov_b32 v{ACC+16+r}, v{RD+r}")
    A.label(Lk)
    A("s_barrier")
    reduce_pair(A,ACC,ACC+16,0,T2,RD)
    for g in range(4):
        for d in range(2):
            x=H_RES+2*g+d; y=B2+2*g+d; r=4*g+2*d
            A(f"v_lshlrev_b32 v{T2}, 16, v{x}", f"v_and_b32 v{T2+1}, 0xffff0000, v{x}",
              f"v_lshlrev_b32 v{T2+2}, 16, v{y}", f"v_and_b32 v{T2+3}, 0xffff0000, v{y}",
              f"v_add_f32 v{ACC+r}, v{ACC+r}, v{T2+2}", f"v_add_f32 v{ACC+r+1}, v{ACC+r+1}, v{T2+3}",
              f"v_add_f32 v{ACC+r}, v{ACC+r}, v{T2}", f"v_add_f32 v{ACC+r+1}, v{ACC+r+1}, v{T2+1}")
    PK=GF+16
    for j in range(8): A(f"v_cvt_pk_bf16_f32 v{PK+j}, v{ACC+2*j}, v{ACC+2*j+1}")
    A.nop(2)
    A(f"v_permlane32_swap_b32 v{PK}, v{PK+2}", f"v_permlane32_swap_b32 v{PK+1}, v{PK+3}",
      f"v_permlane32_swap_b32 v{PK+4}, v{PK+6}", f"v_permlane32_swap_b32 v{PK+5}, v{PK+7}")
    A(f"v_lshlrev_b32 v{T2}, 10, v{T}", f"v_lshl_add_u32 v{T2}, v{T+1}, 4, v{T2}",
      f"s_lshl_b32 s65, s{S_R32}, 15", f"s_lshl_b32 s66, s{S_CT}, 7", "s_add_u32 s65, s65, s66", f"s_lshl_b32 s66, s{S_KH}, 6", "s_add_u32 s65, s65, s66",
      f"buffer_store_dwordx4 {vr(PK,4)}, v{T2}, s[{SRD1}:{SRD1+3}], s65 offen",
      f"buffer_store_dwordx4 {vr(PK+4,4)}, v{T2}, s[{SRD1}:{SRD1+3}], s65 offen offset:32")
    A(f"s_branch {L_done}")
    A.label(L_help)
    srd(A,SRD0,P_W2,1376*1024)
    VW=2
    w128_voff(A,VW,8,1024)
    A(f"s_lshr_b32 s62, s{S_HW}, 1", f"s_and_b32 s63, s{S_HW}, 1",
      f"s_mul_i32 s64, s62, {688*1024}", f"s_lshl_b32 s65, s63, 16", "s_add_u32 s64, s64, s65", f"s_lshl_b32 s65, s{S_CT}, 7", "s_add_u32 s64, s64, s65",
      f"s_mul_i32 s66, s62, {40*2048}", f"s_lshl_b32 s65, s63, 13", "s_add_u32 s66, s66, s65")
    for st in range(5):
        for i in range(8):
            A(f"s_add_u32 m0, s66, {st*16384+i*1024}", f"s_add_u32 s65, s64, {st*131072+i*8192}",
              f"buffer_load_dwordx4 v{VW}, s[{SRD0}:{SRD0+3}], s65 offen lds")
    A("s_waitcnt vmcnt(32)", "s_barrier", "s_waitcnt vmcnt(24)", "s_barrier")
    A(f"s_mul_i32 s64, s62, {688*1024}", f"s_mul_i32 s65, s63, {24*1024}", "s_add_u32 s64, s64, s65", f"s_lshl_b32 s65, s{S_CT}, 7", "s_add_u32 s64, s64, s65",
      f"s_mul_i32 s66, s62, {40*2048}", f"s_mul_i32 s65, s63, {24*128}", "s_add_u32 s66, s66, s65")
    for i in range(3):
        A(f"s_add_u32 m0, s66, {i*1024}", f"s_add_u32 s65, s64, {640*1024+i*8192}",
          f"buffer_load_dwordx4 v{VW}, s[{SRD0}:{SRD0+3}], s65 offen lds")
    A("s_waitcnt vmcnt(19)", "s_barrier", "s_waitcnt vmcnt(11)", "s_barrier", "s_waitcnt vmcnt(3)", "s_barrier", "s_waitcnt vmcnt(0)", "s_barrier")
    A("s_barrier", "s_barrier")
    A.label(L_done)

def kernel(name,phases,cfg,lds):
    A=Asm()
    end=f"L_end_{name}"
    A(f".globl {name}", ".p2align 8", f".type {name},@function"); A.label(name)
    prologue(A,end)
    A.lab=hash(name)%1000*1000
    stamp(A,cfg,0)
    for i,ph in enumerate(phases):
        ph(A,cfg)
        stamp(A,cfg,10+i)
    A.label(end); A("s_endpgm")
    import re as _re
    for l in A.lines:
        m=_re.search(r'offset:(\d+)',l)
        if m:
            lim=65535 if l.startswith('ds_') else 4095
            if int(m.group(1))>lim: print("OFFSET OVERFLOW",l,file=sys.stderr)
    probs=check_hazards(A.lines)
    for p in probs: print("HAZARD",name,p,file=sys.stderr)
    body=A.text()
    desc=f""".amdhsa_kernel {name}
  .amdhsa_next_free_vgpr 256
  .amdhsa_next_free_sgpr 102
  .amdhsa_accum_offset 256
  .amdhsa_group_segment_fixed_size 0
  .amdhsa_kernarg_size 88
  .amdhsa_user_sgpr_count 2
  .amdhsa_user_sgpr_kernarg_segment_ptr 1
  .amdhsa_system_sgpr_workgroup_id_x 1
.end_amdhsa_kernel
"""
    return body,desc

def build(kernels,path):
    hdr=open('cdna_kernels/'+KN.replace('_kernel','')+'.s.ref').read().split('; Override')[0]
    out=hdr
    for (name,ph,cfg,lds) in kernels:
        out+=f"; @launch kernel={name} grid=(256,1,1) block=(512,1,1) lds={lds}\n"
    out+='.amdgcn_target "amdgcn-amd-amdhsa--gfx950"\n.text\n'
    descs=''
    for (name,ph,cfg,lds) in kernels:
        b,d=kernel(name,ph,cfg,lds); out+=b; descs+='.p2align 6\n'+d
    out+='.section .rodata,"a"\n'+descs
    open(path,'w').write(out)

if __name__=='__main__':
    cfg=Cfg()
    if '--stamps' in sys.argv: cfg.stamps=True
    ks=[('p1_kernel',[phase1],cfg,163840),('p2_kernel',[phase2],cfg,163840),('p3_kernel',[phase3],cfg,163840),('p4_kernel',[phase4],cfg,163840),('p5_kernel',[phase5],cfg,163840)]
    build(ks,sys.argv[1])
```
